```python
import torch

def _softmax(x, axis=-1):
    return torch.softmax(x, dim=axis)
def _gelu(x):
    return torch.nn.functional.gelu(x, approximate="tanh")
def _silu(x):
    return torch.nn.functional.silu(x)
def _sigmoid(x):
    return torch.sigmoid(x)
def _layernorm(x, axis=-1, eps=1e-5):
    m = x.mean(dim=axis, keepdim=True)
    v = x.var(dim=axis, keepdim=True, unbiased=False)
    return (x - m) / torch.sqrt(v + eps)
def _scatter_add(tgt, idx, src, axis=0):
    return tgt.clone().index_add_(axis, idx, src)
def _segment_sum(src, seg, n):
    out = torch.zeros((n,) + src.shape[1:], dtype=src.dtype)
    return out.index_add_(0, seg, src)
def _pad(x, pw):
    flat = tuple(v for pair in reversed(pw) for v in pair)
    return torch.nn.functional.pad(x, flat)

kernel_name = 'standalone__sliding_block_cached__decode'

def setup_inputs():

    _w = (lambda a: (lambda t: t.to(torch.bfloat16) if t.is_floating_point() else t)(torch.as_tensor(a)))
    B, Sq, D = 1, 1, 512
    Hq, Hkv, Sk, Dh = 32, 8, 32768, 128
    assert Hq % Hkv == 0, (Hq, Hkv)
    return {
        "x": _w((lambda *s: torch.randn(*s, dtype=torch.bfloat16) * 0.8)(B, Sq, D)),
        "k_cache": _w((lambda *s: torch.randn(*s, dtype=torch.bfloat16) * 0.8)(B, Hkv, Sk, Dh)),
        "v_cache": _w((lambda *s: torch.randn(*s, dtype=torch.bfloat16) * 0.05)(B, Hkv, Sk, Dh)),
        "wq": _w((lambda *s: torch.randn(*s, dtype=torch.bfloat16) * 0.8)(D, Hq * Dh) * (D ** -0.5)),
        "wo": _w((lambda *s: torch.randn(*s, dtype=torch.bfloat16) * 0.05)(Hq * Dh, D) * ((Hq * Dh) ** -0.5)),
    }

def reference(x, k_cache, v_cache, wq, wo):
    B, Sq, D = x.shape
    Hq, Dh = 32, 128
    Hkv, Sk = k_cache.shape[1], k_cache.shape[2]
    W = min(4096, max(256, Sk // 4))
    rep = Hq // Hkv
    q = (lambda x, *d: x.permute(*d))((x @ wq).reshape(B, Sq, Hq, Dh), 0, 2, 1, 3)
    k = (lambda x, n, axis: torch.repeat_interleave(x, n, dim=axis))(k_cache[:, :, Sk - W:, :], rep, axis=1)
    v = (lambda x, n, axis: torch.repeat_interleave(x, n, dim=axis))(v_cache[:, :, Sk - W:, :], rep, axis=1)
    scores = torch.einsum("bhqd,bhkd->bhqk", q, k) * (Dh ** -0.5)
    p = _softmax(scores, axis=-1)
    o = torch.einsum("bhqk,bhkd->bhqd", p, v)
    return (lambda x, *d: x.permute(*d))(o, 0, 2, 1, 3).reshape(B, Sq, Hq * Dh) @ wo
```

```python
import sys
MODE = sys.argv[1] if len(sys.argv) > 1 else 'multi'
FUSED = MODE == 'fused'
KN = 'standalone__sliding_block_cached__decode'

L = []
def e(s=''):
    L.append('    ' + s if s and not s.endswith(':') else s)
def nop(n):
    if n > 0: e(f's_nop {n-1}')

WS_GEN = 0
WS_Q   = 0x1000
WS_PML = 0x8000
WS_PO  = 0x10000
WS_OUTP= 0x120000
VROW = 288
LDS_V   = 0
LDS_RED = 36864
LDS_OW  = 38912
LDS_MW  = 47104
LDS_LW  = 47168
LDS_OS  = 47360
LDS_R   = 49408
LDS_F   = 53504
LDS_TOTAL = 56320

LOG2E = '0x3fb8aa3b'
SCALE = '0x3db504f3'

def prologue(nwg):
    e(f's_cmp_ge_u32 s2, {nwg}')
    e('s_cbranch_scc1 L_end_%s' % cur)
    e('s_load_dwordx16 s[4:19], s[0:1], 0')
    e('s_and_b32 s20, s2, 7')
    e('s_lshr_b32 s21, s2, 3')
    e('v_and_b32 v1, 63, v0')
    e('v_lshrrev_b32 v2, 6, v0')
    e('v_mov_b32 v3, 0')
    nop(1)
    e('v_readfirstlane_b32 s25, v2')
    e('s_waitcnt lgkmcnt(0)')
    e('global_load_dword v4, v3, s[18:19] sc1')

def get_tag(cnt):
    e(f's_waitcnt vmcnt({cnt})')
    e('v_readfirstlane_b32 s23, v4')
    e('s_mul_i32 s22, s23, 0x9E3779B1')
    e('s_add_u32 s22, s22, 0x7F4A7C15')

def load_wq():
    e('s_lshl_b32 s26, s20, 10')
    e('s_lshl_b32 s27, s21, 5')
    e('s_add_u32 s26, s26, s27')
    e('v_lshrrev_b32 v5, 1, v0')
    e('v_lshlrev_b32 v6, 1, v5')
    e('v_lshlrev_b32 v5, 13, v5')
    e('v_and_b32 v7, 1, v0')
    e('v_lshl_add_u32 v5, v7, 4, v5')
    e('v_add_u32 v5, s26, v5')
    for p in range(4):
        e(f'global_load_ushort v{24+p}, v6, s[4:5] offset:{p*256}')
    for p in range(4):
        if p: e('v_add_u32 v5, 0x100000, v5')
        e(f'global_load_dwordx4 v[{8+4*p}:{11+4*p}], v5, s[10:11]')

def kv_base():
    e('s_lshl_b32 s26, s20, 23')
    e('s_lshl_b32 s27, s21, 15')
    e('s_add_u32 s26, s26, s27')
    e('s_add_u32 s26, s26, %d' % (28672*256))
    e('s_add_u32 s30, s6, s26')
    e('s_addc_u32 s31, s7, 0')
    e('s_add_u32 s32, s8, s26')
    e('s_addc_u32 s33, s9, 0')

def load_k():
    e('v_and_b32 v5, 15, v1')
    e('v_lshl_add_u32 v5, v2, 5, v5')
    e('v_lshlrev_b32 v5, 8, v5')
    e('v_lshrrev_b32 v6, 4, v1')
    e('v_lshl_add_u32 v5, v6, 4, v5')
    e('v_add_u32 v6, 4096, v5')
    for tt in range(2):
        for s in range(4):
            r = 40 + 16*tt + 4*s
            e(f'global_load_dwordx4 v[{r}:{r+3}], v{5+tt}, s[30:31] offset:{s*64}')

def load_v():
    e('v_lshlrev_b32 v5, 13, v2')
    e('v_lshl_add_u32 v5, v1, 4, v5')
    e('v_add_u32 v6, 4096, v5')
    for j in range(8):
        r = 72 + 4*j
        e(f'global_load_dwordx4 v[{r}:{r+3}], v{5+(j>>2)}, s[32:33] offset:{(j&3)*1024}')

def load_wo():
    e('s_lshr_b32 s26, s21, 3')
    e('s_lshl_b32 s27, s20, 2')
    e('s_add_u32 s34, s26, s27')
    e('s_and_b32 s35, s21, 7')
    e('s_lshl_b32 s26, s34, 17')
    e('s_lshl_b32 s27, s35, 7')
    e('s_add_u32 s26, s26, s27')
    e('v_lshrrev_b32 v5, 3, v0')
    e('v_lshlrev_b32 v5, 10, v5')
    e('v_and_b32 v6, 7, v0')
    e('v_lshl_add_u32 v5, v6, 4, v5')
    e('v_add_u32 v5, s26, v5')
    for p in range(4):
        if p: e('v_add_u32 v5, 0x8000, v5')
        e(f'global_load_dwordx4 v[{104+4*p}:{107+4*p}], v5, s[12:13]')

def hc_only():
    e('s_lshr_b32 s26, s21, 3')
    e('s_lshl_b32 s27, s20, 2')
    e('s_add_u32 s34, s26, s27')
    e('s_and_b32 s35, s21, 7')

def stage1(cnt_after):
    e(f's_waitcnt vmcnt({cnt_after})')
    for j in range(8): e(f'v_mov_b32 v{28+j}, 0')
    for p in range(4):
        e(f'v_lshlrev_b32 v{24+p}, 16, v{24+p}')
    for p in range(4):
        for d in range(4):
            w = 8+4*p+d
            e(f'v_lshlrev_b32 v36, 16, v{w}')
            e(f'v_and_b32 v37, 0xffff0000, v{w}')
            e(f'v_fmac_f32 v{28+2*d}, v{24+p}, v36')
            e(f'v_fmac_f32 v{29+2*d}, v{24+p}, v37')
    nop(2)
    for mod in ('quad_perm:[2,3,0,1]', 'row_ror:4', 'row_ror:8'):
        for j in range(8):
            e(f'v_add_f32_dpp v{28+j}, v{28+j}, v{28+j} {mod} row_mask:0xf bank_mask:0xf')
        nop(2)
    e('v_lshrrev_b32 v5, 4, v0')
    e('v_lshlrev_b32 v5, 6, v5')
    e('v_and_b32 v6, 1, v0')
    e('v_lshl_add_u32 v5, v6, 5, v5')
    e('v_and_b32 v6, 15, v0')
    e('v_cmp_gt_u32 vcc, 2, v6')
    e('s_and_saveexec_b64 s[36:37], vcc')
    e(f'ds_write_b128 v5, v[28:31] offset:{LDS_RED}')
    e(f'ds_write_b128 v5, v[32:35] offset:{LDS_RED+16}')
    e('s_mov_b64 exec, s[36:37]')
    e('s_waitcnt lgkmcnt(0)')
    e('s_barrier')
    e('s_cmp_lg_u32 s25, 0')
    e('s_cbranch_scc1 L_s1done_%s' % cur)
    e('v_and_b32 v5, 15, v1')
    e('v_lshlrev_b32 v5, 2, v5')
    for r in range(16):
        e(f'ds_read_b32 v{8+r}, v5 offset:{LDS_RED + r*64}')
    e('s_waitcnt lgkmcnt(0)')
    for r in range(1,16):
        e(f'v_add_f32 v8, v8, v{8+r}')
    nop(2)
    e('v_mov_b32_dpp v9, v8 quad_perm:[1,0,3,2] row_mask:0xf bank_mask:0xf')
    nop(1)
    e('v_cvt_pk_bf16_f32 v10, v8, v9')
    e('v_mov_b32 v11, s22')
    e('s_lshl_b32 s26, s20, 11')
    e('s_lshl_b32 s27, s21, 6')
    e('s_add_u32 s26, s26, s27')
    e('s_add_u32 s26, s26, %d' % WS_Q)
    e('v_lshlrev_b32 v5, 2, v1')
    e('v_add_u32 v5, s26, v5')
    e('v_and_b32 v6, 0x31, v1')
    e('v_cmp_eq_u32 vcc, 0, v6')
    e('s_and_saveexec_b64 s[36:37], vcc')
    e('global_store_dwordx2 v5, v[10:11], s[18:19] sc1')
    e('s_mov_b64 exec, s[36:37]')
    e('L_s1done_%s:' % cur)

def poll_loop(name, loads, tagregs, tmp):
    e('s_mov_b32 s38, 0')
    e(f'L_poll_{name}_{cur}:')
    for ld in loads: e(ld)
    e('s_waitcnt vmcnt(0)')
    e(f'v_xor_b32 v{tmp}, s22, v{tagregs[0]}')
    for r in tagregs[1:]:
        e(f'v_xor_b32 v{tmp+1}, s22, v{r}')
        e(f'v_or_b32 v{tmp}, v{tmp}, v{tmp+1}')
    e(f'v_cmp_ne_u32 vcc, 0, v{tmp}')
    nop(2)
    e('s_cmp_eq_u64 vcc, 0')
    e(f's_cbranch_scc1 L_pollok_{name}_{cur}')
    e('s_add_u32 s38, s38, 1')
    e('s_cmp_lt_u32 s38, 0x40000')
    e(f's_cbranch_scc0 L_pollok_{name}_{cur}')
    e('s_sleep 1')
    e(f's_branch L_poll_{name}_{cur}')
    e(f'L_pollok_{name}_{cur}:')

def stage2(v_in_regs_cnt):
    e('s_lshl_b32 s26, s20, 11')
    e('s_add_u32 s26, s26, %d' % WS_Q)
    e('v_and_b32 v5, 3, v1')
    e('v_lshlrev_b32 v5, 9, v5')
    e('v_lshrrev_b32 v6, 4, v1')
    e('v_lshl_add_u32 v5, v6, 5, v5')
    e('v_add_u32 v5, s26, v5')
    loads = []
    for s in range(4):
        for hh in range(2):
            r = 136 + 8*s + 4*hh
            loads.append(f'global_load_dwordx4 v[{r}:{r+3}], v5, s[18:19] offset:{s*128+hh*16} sc1')
    tags = [136 + 2*k + 1 for k in range(16)]
    poll_loop('q', loads, tags, 168)
    e('v_lshrrev_b32 v6, 4, v1')
    e('v_lshl_add_u32 v6, v2, 5, v6')
    e('s_movk_i32 s26, %d' % VROW)
    e('v_mul_lo_u32 v6, v6, s26')
    e('v_and_b32 v7, 15, v1')
    e('v_lshl_add_u32 v6, v7, 4, v6')
    for j in range(8):
        r = 72+4*j
        e(f'ds_write_b128 v6, v[{r}:{r+3}] offset:{LDS_V + j*4*VROW}')
    for k in range(16):
        e(f'v_mov_b32 v{120+k}, v{136+2*k}')
    nop(2)
    for tt in range(2):
        D = 170 + 4*tt
        for s in range(4):
            a = 40 + 16*tt + 4*s
            b = 120 + 4*s
            c = '0' if s == 0 else f'v[{D}:{D+3}]'
            e(f'v_mfma_f32_16x16x32_bf16 v[{D}:{D+3}], v[{a}:{a+3}], v[{b}:{b+3}], {c}')
    e('v_lshrrev_b32 v6, 4, v1')
    e('v_lshlrev_b32 v6, 2, v6')
    e('v_lshl_add_u32 v6, v2, 5, v6')
    e('v_bfe_u32 v7, v1, 2, 2')
    e('v_add_u32 v6, v6, v7')
    e('v_mul_lo_u32 v6, v6, s26')
    e('v_and_b32 v7, 3, v1')
    e('v_lshl_add_u32 v6, v7, 3, v6')
    e('v_xor_b32 v7, 16, v1')
    e('v_lshlrev_b32 v7, 2, v7')
    e('v_xor_b32 v169, 32, v1')
    e('v_lshlrev_b32 v169, 2, v169')
    e('s_waitcnt lgkmcnt(0)')
    for nt in range(8):
        r = 72 + 4*nt
        e(f'ds_read_b64_tr_b16 v[{r}:{r+1}], v6 offset:{LDS_V + nt*32}')
        e(f'ds_read_b64_tr_b16 v[{r+2}:{r+3}], v6 offset:{LDS_V + nt*32 + 16*VROW}')
    nop(4)
    e(f's_mov_b32 s26, {SCALE}')
    for k in range(4):
        e(f'v_cvt_pk_bf16_f32 v{136+k}, v{170+2*k}, v{171+2*k}')
    for k in range(4):
        e(f'v_lshlrev_b32 v{170+2*k}, 16, v{136+k}')
        e(f'v_and_b32 v{171+2*k}, 0xffff0000, v{136+k}')
    for k in range(8):
        e(f'v_mul_f32 v{170+k}, s26, v{170+k}')
    for k in range(4):
        e(f'v_cvt_pk_bf16_f32 v{136+k}, v{170+2*k}, v{171+2*k}')
    for k in range(4):
        e(f'v_lshlrev_b32 v{170+2*k}, 16, v{136+k}')
        e(f'v_and_b32 v{171+2*k}, 0xffff0000, v{136+k}')
    e('v_max3_f32 v140, v170, v171, v172')
    e('v_max3_f32 v141, v173, v174, v175')
    e('v_max3_f32 v140, v140, v176, v177')
    e('v_max_f32 v140, v140, v141')
    e('ds_bpermute_b32 v141, v7, v140')
    e('s_waitcnt lgkmcnt(0)')
    e('v_max_f32 v140, v140, v141')
    e('ds_bpermute_b32 v141, v169, v140')
    e('s_waitcnt lgkmcnt(0)')
    e('v_max_f32 v140, v140, v141')
    e(f's_mov_b32 s26, {LOG2E}')
    for k in range(8):
        e(f'v_sub_f32 v{170+k}, v{170+k}, v140')
    for k in range(8):
        e(f'v_mul_f32 v{170+k}, s26, v{170+k}')
    for k in range(8):
        e(f'v_exp_f32 v{170+k}, v{170+k}')
    nop(1)
    e('v_add_f32 v142, v170, v171')
    e('v_add_f32 v143, v172, v173')
    e('v_add_f32 v144, v174, v175')
    e('v_add_f32 v145, v176, v177')
    e('v_add_f32 v142, v142, v143')
    e('v_add_f32 v144, v144, v145')
    e('v_add_f32 v142, v142, v144')
    for k in range(4):
        e(f'v_cvt_pk_bf16_f32 v{136+k}, v{170+2*k}, v{171+2*k}')
    e('ds_bpermute_b32 v143, v7, v142')
    e('s_waitcnt lgkmcnt(0)')
    e('v_add_f32 v142, v142, v143')
    e('ds_bpermute_b32 v143, v169, v142')
    e('s_waitcnt lgkmcnt(0)')
    e('v_add_f32 v142, v142, v143')
    nop(2)
    for nt in range(8):
        b = 72 + 4*nt
        D = 180 + 4*nt
        e(f'v_mfma_f32_16x16x32_bf16 v[{D}:{D+3}], v[136:139], v[{b}:{b+3}], 0')
    e('v_lshl_add_u32 v5, v2, 7, v1')
    e('v_lshlrev_b32 v5, 4, v5')
    e('v_lshl_add_u32 v6, v2, 2, v1')
    e('v_lshlrev_b32 v6, 2, v6')
    nop(8)
    e('s_mov_b64 exec, 0xffff')
    for nt in range(8):
        D = 180 + 4*nt
        e(f'ds_write_b128 v5, v[{D}:{D+3}] offset:{LDS_OW + nt*256}')
    e('s_mov_b64 exec, 0xf')
    e(f'ds_write_b32 v6, v140 offset:{LDS_MW}')
    e(f'ds_write_b32 v6, v142 offset:{LDS_LW}')
    e('s_mov_b64 exec, -1')
    e('s_waitcnt lgkmcnt(0)')
    e('s_barrier')
    e('v_and_b32 v5, 127, v0')
    e('v_lshrrev_b32 v7, 7, v0')
    e('v_lshlrev_b32 v6, 4, v5')
    e('v_lshl_add_u32 v6, v7, 3, v6')
    e('v_lshlrev_b32 v8, 3, v7')
    for w in range(4):
        e(f'ds_read_b64 v[{10+2*w}:{11+2*w}], v6 offset:{LDS_OW + w*2048}')
        e(f'ds_read_b64 v[{20+2*w}:{21+2*w}], v8 offset:{LDS_MW + w*16}')
        e(f'ds_read_b64 v[{30+2*w}:{31+2*w}], v8 offset:{LDS_LW + w*16}')
    e('s_waitcnt lgkmcnt(0)')
    for hh in range(2):
        e(f'v_max3_f32 v{40+hh}, v{20+hh}, v{22+hh}, v{24+hh}')
        e(f'v_max_f32 v{40+hh}, v{40+hh}, v{26+hh}')
        for w in range(4):
            e(f'v_sub_f32 v{20+2*w+hh}, v{20+2*w+hh}, v{40+hh}')
        for w in range(4):
            e(f'v_mul_f32 v{20+2*w+hh}, s26, v{20+2*w+hh}')
        for w in range(4):
            e(f'v_exp_f32 v{20+2*w+hh}, v{20+2*w+hh}')
        nop(1)
        e(f'v_mul_f32 v{44+hh}, v{20+hh}, v{10+hh}')
        e(f'v_mul_f32 v{46+hh}, v{20+hh}, v{30+hh}')
        for w in range(1,4):
            e(f'v_fmac_f32 v{44+hh}, v{20+2*w+hh}, v{10+2*w+hh}')
            e(f'v_fmac_f32 v{46+hh}, v{20+2*w+hh}, v{30+2*w+hh}')
    e('s_lshl_b32 s26, s20, 17')
    e('s_lshl_b32 s27, s21, 10')
    e('s_add_u32 s26, s26, s27')
    e('s_add_u32 s26, s26, %d' % WS_PO)
    e('v_lshlrev_b32 v6, 3, v5')
    e('v_lshl_add_u32 v6, v7, 16, v6')
    e('v_add_u32 v6, s26, v6')
    e('v_add_u32 v9, 0x8000, v6')
    e('v_mov_b32 v50, v44')
    e('v_mov_b32 v51, s22')
    e('v_mov_b32 v52, v45')
    e('v_mov_b32 v53, s22')
    e('global_store_dwordx2 v6, v[50:51], s[18:19] sc1')
    e('global_store_dwordx2 v9, v[52:53], s[18:19] sc1')
    e('s_lshl_b32 s26, s20, 11')
    e('s_lshl_b32 s27, s21, 4')
    e('s_add_u32 s26, s26, s27')
    e('s_add_u32 s26, s26, %d' % WS_PML)
    e('v_lshlrev_b32 v6, 10, v7')
    e('v_add_u32 v6, s26, v6')
    e('v_mov_b32 v54, v40'); e('v_mov_b32 v55, s22'); e('v_mov_b32 v56, v46'); e('v_mov_b32 v57, s22')
    e('v_mov_b32 v58, v41'); e('v_mov_b32 v59, s22'); e('v_mov_b32 v60, v47'); e('v_mov_b32 v61, s22')
    e('v_cmp_eq_u32 vcc, 0, v5')
    e('s_and_saveexec_b64 s[36:37], vcc')
    e('s_cbranch_execz L_noml_%s' % cur)
    e('global_store_dwordx4 v6, v[54:57], s[18:19] sc1')
    e('global_store_dwordx4 v6, v[58:61], s[18:19] offset:512 sc1')
    e('L_noml_%s:' % cur)
    e('s_mov_b64 exec, s[36:37]')

def stage34():
    e('s_lshl_b32 s26, s34, 9')
    e('s_add_u32 s26, s26, %d' % WS_PML)
    e('v_and_b32 v5, 31, v1')
    e('v_lshlrev_b32 v5, 4, v5')
    e('v_add_u32 v5, s26, v5')
    e('s_lshl_b32 s26, s34, 15')
    e('s_add_u32 s26, s26, %d' % WS_PO)
    e('v_lshlrev_b32 v6, 10, v2')
    e('v_lshl_add_u32 v6, v1, 4, v6')
    e('v_add_u32 v6, s26, v6')
    for k in range(1,8):
        e(f'v_add_u32 v{70+k}, {k*4096}, v6')
    loads = ['global_load_dwordx4 v[8:11], v5, s[18:19] sc1']
    for k in range(8):
        r = 136+4*k
        a = 'v6' if k == 0 else f'v{70+k}'
        loads.append(f'global_load_dwordx4 v[{r}:{r+3}], {a}, s[18:19] sc1')
    tags = [9, 11] + [136+2*k+1 for k in range(16)]
    poll_loop('p', loads, tags, 168)
    e('v_xor_b32 v7, 16, v1')
    e('v_lshlrev_b32 v7, 2, v7')
    e('v_mov_b32 v12, v8')
    nop(2)
    for mod in ('quad_perm:[1,0,3,2]', 'quad_perm:[2,3,0,1]', 'row_ror:4', 'row_ror:8'):
        e(f'v_max_f32_dpp v12, v12, v12 {mod} row_mask:0xf bank_mask:0xf')
        nop(2)
    e('ds_bpermute_b32 v13, v7, v12')
    e('s_waitcnt lgkmcnt(0)')
    e('v_max_f32 v12, v12, v13')
    e(f's_mov_b32 s26, {LOG2E}')
    e('v_sub_f32 v8, v8, v12')
    e('v_mul_f32 v8, s26, v8')
    e('v_exp_f32 v8, v8')
    nop(1)
    e('v_mul_f32 v12, v8, v10')
    nop(2)
    for mod in ('quad_perm:[1,0,3,2]', 'quad_perm:[2,3,0,1]', 'row_ror:4', 'row_ror:8'):
        e(f'v_add_f32_dpp v12, v12, v12 {mod} row_mask:0xf bank_mask:0xf')
        nop(2)
    e('ds_bpermute_b32 v13, v7, v12')
    e('s_waitcnt lgkmcnt(0)')
    e('v_add_f32 v12, v12, v13')
    e('v_rcp_f32 v12, v12')
    for k in range(8):
        e(f's_add_u32 s26, s25, {4*k}')
        e(f'v_readlane_b32 s{40+k}, v8, s26')
    nop(2)
    e('v_mul_f32 v14, s40, v136')
    e('v_mul_f32 v15, s40, v138')
    for k in range(1,8):
        e(f'v_fma_f32 v14, s{40+k}, v{136+4*k}, v14')
        e(f'v_fma_f32 v15, s{40+k}, v{138+4*k}, v15')
    e('v_mul_f32 v14, v14, v12')
    e('v_mul_f32 v15, v15, v12')
    e('v_lshlrev_b32 v5, 9, v2')
    e('v_lshl_add_u32 v5, v1, 3, v5')
    e(f'ds_write_b64 v5, v[14:15] offset:{LDS_OS}')
    e('s_waitcnt lgkmcnt(0)')
    e('s_barrier')
    e('v_lshrrev_b32 v5, 3, v0')
    e('v_lshlrev_b32 v5, 2, v5')
    for p in range(4):
        for w in range(4):
            e(f'ds_read_b32 v{136+4*p+w}, v5 offset:{LDS_OS + w*512 + p*128}')
    e('s_waitcnt lgkmcnt(0)')
    for p in range(4):
        e(f'v_add_f32 v{136+4*p}, v{136+4*p}, v{137+4*p}')
        e(f'v_add_f32 v{138+4*p}, v{138+4*p}, v{139+4*p}')
        e(f'v_add_f32 v{136+4*p}, v{136+4*p}, v{138+4*p}')
    for p in range(4):
        e(f'v_cvt_pk_bf16_f32 v{136+4*p}, v{136+4*p}, v{136+4*p}')
    for p in range(4):
        e(f'v_lshlrev_b32 v{24+p}, 16, v{136+4*p}')
    e('s_waitcnt vmcnt(0)')
    for j in range(8): e(f'v_mov_b32 v{28+j}, 0')
    for p in range(4):
        for d in range(4):
            w = 104+4*p+d
            e(f'v_lshlrev_b32 v36, 16, v{w}')
            e(f'v_and_b32 v37, 0xffff0000, v{w}')
            e(f'v_fmac_f32 v{28+2*d}, v{24+p}, v36')
            e(f'v_fmac_f32 v{29+2*d}, v{24+p}, v37')
    nop(2)
    for j in range(8):
        e(f'v_add_f32_dpp v{28+j}, v{28+j}, v{28+j} row_ror:8 row_mask:0xf bank_mask:0xf')
    e('v_lshrrev_b32 v5, 4, v0')
    e('v_lshlrev_b32 v5, 8, v5')
    e('v_and_b32 v6, 7, v0')
    e('v_lshl_add_u32 v5, v6, 5, v5')
    e('v_and_b32 v6, 8, v0')
    e('v_cmp_eq_u32 vcc, 0, v6')
    e('s_and_saveexec_b64 s[36:37], vcc')
    e(f'ds_write_b128 v5, v[28:31] offset:{LDS_R}')
    e(f'ds_write_b128 v5, v[32:35] offset:{LDS_R+16}')
    e('s_mov_b64 exec, s[36:37]')
    e('s_waitcnt lgkmcnt(0)')
    e('s_barrier')
    e('s_cmp_lg_u32 s25, 0')
    e('s_cbranch_scc1 L_s4done_%s' % cur)
    e('v_lshlrev_b32 v5, 2, v1')
    for r in range(16):
        e(f'ds_read_b32 v{8+r}, v5 offset:{LDS_R + r*256}')
    e('s_waitcnt lgkmcnt(0)')
    for r in range(1,16):
        e(f'v_add_f32 v8, v8, v{8+r}')
    e('v_mov_b32 v9, s22')
    e('s_lshl_b32 s26, s35, 14')
    e('s_lshl_b32 s27, s34, 9')
    e('s_add_u32 s26, s26, s27')
    e('s_add_u32 s26, s26, %d' % WS_OUTP)
    e('v_lshlrev_b32 v5, 3, v1')
    e('v_add_u32 v5, s26, v5')
    e('global_store_dwordx2 v5, v[8:9], s[18:19] sc1')
    e('L_s4done_%s:' % cur)

def final(creg):
    e(f's_lshl_b32 s26, {creg}, 14')
    e('s_add_u32 s26, s26, %d' % WS_OUTP)
    e('v_lshrrev_b32 v5, 5, v0')
    e('v_lshlrev_b32 v5, 11, v5')
    e('v_and_b32 v6, 31, v0')
    e('v_lshl_add_u32 v5, v6, 4, v5')
    e('v_add_u32 v5, s26, v5')
    loads = [f'global_load_dwordx4 v[{136+4*k}:{139+4*k}], v5, s[18:19] offset:{k*512} sc1' for k in range(4)]
    tags = [136+2*k+1 for k in range(8)]
    poll_loop('f', loads, tags, 168)
    e('v_add_f32 v14, v136, v140'); e('v_add_f32 v15, v138, v142')
    e('v_add_f32 v16, v144, v148'); e('v_add_f32 v17, v146, v150')
    e('v_add_f32 v14, v14, v16');   e('v_add_f32 v15, v15, v17')
    e('v_lshrrev_b32 v5, 5, v0')
    e('v_lshlrev_b32 v5, 8, v5')
    e('v_lshl_add_u32 v5, v6, 3, v5')
    e(f'ds_write_b64 v5, v[14:15] offset:{LDS_F}')
    e('s_waitcnt lgkmcnt(0)')
    e('s_barrier')
    e('s_cmp_lg_u32 s25, 0')
    e('s_cbranch_scc1 L_end_%s' % cur)
    e('v_lshlrev_b32 v5, 3, v6')
    for r in range(8):
        e(f'ds_read_b64 v[{8+2*r}:{9+2*r}], v5 offset:{LDS_F + r*256}')
    e('s_waitcnt lgkmcnt(0)')
    for r in range(1,8):
        e(f'v_add_f32 v8, v8, v{8+2*r}')
        e(f'v_add_f32 v9, v9, v{9+2*r}')
    e('v_cvt_pk_bf16_f32 v8, v8, v9')
    e(f's_lshl_b32 s26, {creg}, 7')
    e('v_lshlrev_b32 v5, 2, v6')
    e('v_add_u32 v5, s26, v5')
    e('s_mov_b64 exec, 0xffffffff')
    e('global_store_dword v5, v8, s[14:15]')
    e(f's_cmp_lg_u32 {creg}, 0')
    e('s_cbranch_scc1 L_end_%s' % cur)
    e('s_add_u32 s26, s23, 1')
    e('v_mov_b32 v9, s26')
    e('v_mov_b32 v5, 0')
    e('s_mov_b64 exec, 1')
    e('global_store_dword v5, v9, s[18:19] sc1')

def kernel_begin(name):
    global cur
    cur = name
    e(f'.globl {name}_kernel')
    e('.p2align 8')
    e(f'.type {name}_kernel,@function')
    e(f'{name}_kernel:')
def kernel_end(name):
    e(f'L_end_{name}:')
    e('s_endpgm')

kernels = []
hdr = open('cdna_kernels/%s.s.ref' % KN).read().split('; Override launch')[0]
out = [hdr.rstrip('\n')]
if FUSED:
    out.append(f'; @launch grid=(256,1,1) block=(256,1,1) lds={LDS_TOTAL}')
else:
    for nm, gx in (('qproj',256),('attn',256),('oproj',256),('fin',8)):
        out.append(f'; @launch kernel={nm}_kernel grid=({gx},1,1) block=(256,1,1) lds={LDS_TOTAL}')
out.append('.amdgcn_target "amdgcn-amd-amdhsa--gfx950"')
out.append('.text')

if FUSED:
    kernel_begin(KN)
    prologue(256)
    load_wq(); kv_base(); load_k(); load_v(); load_wo()
    get_tag(4+4+8+8+4)
    stage1(8+8+4)
    stage2(0)
    stage34()
    e('s_cmp_lg_u32 s20, 0')
    e('s_cbranch_scc1 L_end_%s' % cur)
    e('s_cmp_ge_u32 s21, 8')
    e('s_cbranch_scc1 L_end_%s' % cur)
    final('s21')
    kernel_end(KN)
    kernels = [KN]
else:
    kernel_begin('qproj'); prologue(256); load_wq(); get_tag(8); stage1(0); kernel_end('qproj')
    kernel_begin('attn'); prologue(256); kv_base(); load_k(); load_v(); get_tag(16); stage2(0); kernel_end('attn')
    kernel_begin('oproj'); prologue(256); load_wo(); get_tag(4); stage34(); kernel_end('oproj')
    kernel_begin('fin'); prologue(8); get_tag(0); final('s2'); kernel_end('fin')
    kernels = ['qproj','attn','oproj','fin']

out += L
out.append('.section .rodata,"a"')
for k in kernels:
    out.append('.p2align 6')
    out.append(f'.amdhsa_kernel {k}_kernel')
    out.append('  .amdhsa_next_free_vgpr 216')
    out.append('  .amdhsa_next_free_sgpr 64')
    out.append('  .amdhsa_accum_offset 216')
    out.append('  .amdhsa_group_segment_fixed_size 0')
    out.append('  .amdhsa_kernarg_size 64')
    out.append('  .amdhsa_user_sgpr_count 2')
    out.append('  .amdhsa_user_sgpr_kernarg_segment_ptr 1')
    out.append('  .amdhsa_system_sgpr_workgroup_id_x 1')
    out.append('.end_amdhsa_kernel')
open(sys.argv[2] if len(sys.argv) > 2 else 'cdna_kernels/%s.s' % KN, 'w').write('\n'.join(out) + '\n')
```

```python
import sys
MODE = sys.argv[1] if len(sys.argv) > 1 else 'fused'
STAMP = MODE.endswith('stamp')
KN = 'standalone__sliding_block_cached__decode'
L = []
def e(s=''):
    L.append('    ' + s if s and not s.endswith(':') else s)
def nop(n):
    if n > 0: e(f's_nop {n-1}')

WS_Q   = 0x1000
WS_PML = 0x8000
WS_PO  = 0x10000
WS_OUTP= 0x120000
WS_STAMP = 0x300000
LDS_RED = 0
LDS_Q   = 1024
LDS_OW  = 2048
LDS_MW  = 10240
LDS_LW  = 10304
LDS_OS  = 10496
LDS_F   = 11008
LDS_R   = 11520
LDS_K   = 28672
LDS_V   = 61440
LDS_TOTAL = 94208
LOG2E = '0x3fb8aa3b'
SCALE = '0x3db504f3'

def stamp(k):
    if STAMP: e(f's_memrealtime s[{64+2*k}:{65+2*k}]')
def stamp_dump():
    if not STAMP: return
    e('s_mov_b64 exec, 1')
    e('s_waitcnt lgkmcnt(0) vmcnt(0)')
    e('s_lshl_b32 s26, s2, 3')
    e('s_add_u32 s26, s26, s25')
    e('s_lshl_b32 s26, s26, 7')
    e('s_add_u32 s26, s26, %d' % WS_STAMP)
    e('v_mov_b32 v5, s26')
    for k in range(16):
        e(f'v_mov_b32 v6, s{64+2*k}')
        e(f'v_mov_b32 v7, s{65+2*k}')
        e(f'global_store_dwordx2 v5, v[6:7], s[18:19] offset:{8*k}')
        e('s_waitcnt vmcnt(0)')

def poll_loop(name, loads, tagregs, tmp):
    e('s_mov_b32 s38, 0')
    e(f'L_poll_{name}:')
    for ld in loads: e(ld)
    e('s_waitcnt vmcnt(0)')
    e(f'v_xor_b32 v{tmp}, s22, v{tagregs[0]}')
    for r in tagregs[1:]:
        e(f'v_xor_b32 v{tmp+1}, s22, v{r}')
        e(f'v_or_b32 v{tmp}, v{tmp}, v{tmp+1}')
    e(f'v_cmp_ne_u32 vcc, 0, v{tmp}')
    nop(2)
    e('s_cmp_eq_u64 vcc, 0')
    e(f's_cbranch_scc1 L_pollok_{name}')
    e('s_add_u32 s38, s38, 1')
    e('s_cmp_lt_u32 s38, 0x40000')
    e(f's_cbranch_scc0 L_pollok_{name}')
    e('s_sleep 1')
    e(f's_branch L_poll_{name}')
    e(f'L_pollok_{name}:')

def get_tag(cnt):
    e(f's_waitcnt vmcnt({cnt})')
    e('v_readfirstlane_b32 s23, v4')
    e('s_mul_i32 s22, s23, 0x9E3779B1')
    e('s_add_u32 s22, s22, 0x7F4A7C15')

def load_wo():
    e('s_lshl_b32 s26, s34, 17')
    e('s_lshl_b32 s27, s35, 14')
    e('s_add_u32 s26, s26, s27')
    e('v_lshlrev_b32 v5, 11, v2')
    e('v_lshl_add_u32 v5, v1, 4, v5')
    e('v_add_u32 v5, s26, v5')
    e('global_load_dwordx4 v[104:107], v5, s[12:13] nt')
    e('global_load_dwordx4 v[108:111], v5, s[12:13] offset:1024 nt')

e(f'.globl {KN}_kernel'); e('.p2align 8'); e(f'.type {KN}_kernel,@function'); e(f'{KN}_kernel:')
e('s_cmp_ge_u32 s2, 256')
e('s_cbranch_scc1 L_exit')
if STAMP:
    for k in range(16): e(f's_mov_b64 s[{64+2*k}:{65+2*k}], 0')
stamp(0)
e('s_load_dwordx16 s[4:19], s[0:1], 0')
e('s_and_b32 s20, s2, 7')
e('s_lshr_b32 s21, s2, 3')
e('v_and_b32 v1, 63, v0')
e('v_lshrrev_b32 v2, 6, v0')
e('v_mov_b32 v3, 0')
e('s_lshr_b32 s26, s21, 3')
e('s_lshl_b32 s27, s20, 2')
e('s_add_u32 s34, s26, s27')
e('s_and_b32 s35, s21, 7')
e('v_readfirstlane_b32 s25, v2')
e('s_waitcnt lgkmcnt(0)')
e('global_load_dword v4, v3, s[18:19] sc1')
e('s_cmp_ge_u32 s25, 4')
e('s_cbranch_scc1 L_bwave')

e('s_lshl_b32 s26, s20, 10')
e('s_lshl_b32 s27, s21, 5')
e('s_add_u32 s26, s26, s27')
e('v_lshrrev_b32 v5, 1, v0')
e('v_lshlrev_b32 v6, 1, v5')
e('v_lshlrev_b32 v5, 13, v5')
e('v_and_b32 v7, 1, v0')
e('v_lshl_add_u32 v5, v7, 4, v5')
e('v_add_u32 v5, s26, v5')
for p in range(4):
    e(f'global_load_ushort v{24+p}, v6, s[4:5] offset:{p*256}')
for p in range(4):
    if p: e('v_add_u32 v5, 0x100000, v5')
    e(f'global_load_dwordx4 v[{8+4*p}:{11+4*p}], v5, s[10:11] nt')
load_wo()
stamp(1)
get_tag(10)
e('s_waitcnt vmcnt(2)')
stamp(3)
for j in range(8): e(f'v_mov_b32 v{28+j}, 0')
for p in range(4):
    e(f'v_lshlrev_b32 v{24+p}, 16, v{24+p}')
for p in range(4):
    for d in range(4):
        w = 8+4*p+d
        e(f'v_lshlrev_b32 v36, 16, v{w}')
        e(f'v_and_b32 v37, 0xffff0000, v{w}')
        e(f'v_fmac_f32 v{28+2*d}, v{24+p}, v36')
        e(f'v_fmac_f32 v{29+2*d}, v{24+p}, v37')
nop(2)
for mod in ('quad_perm:[2,3,0,1]', 'row_ror:4', 'row_ror:8'):
    for j in range(8):
        e(f'v_add_f32_dpp v{28+j}, v{28+j}, v{28+j} {mod} row_mask:0xf bank_mask:0xf')
    nop(2)
e('v_lshrrev_b32 v5, 4, v0')
e('v_lshlrev_b32 v5, 6, v5')
e('v_and_b32 v6, 1, v0')
e('v_lshl_add_u32 v5, v6, 5, v5')
e('v_and_b32 v6, 15, v0')
e('v_cmp_gt_u32 vcc, 2, v6')
e('s_and_saveexec_b64 s[36:37], vcc')
e(f'ds_write_b128 v5, v[28:31] offset:{LDS_RED}')
e(f'ds_write_b128 v5, v[32:35] offset:{LDS_RED+16}')
e('s_mov_b64 exec, s[36:37]')
e('s_waitcnt lgkmcnt(0)')
e('s_barrier')
e('s_cmp_lg_u32 s25, 0')
e('s_cbranch_scc1 L_s1done')
e('v_and_b32 v5, 15, v1')
e('v_lshlrev_b32 v5, 2, v5')
for r in range(16):
    e(f'ds_read_b32 v{8+r}, v5 offset:{LDS_RED + r*64}')
e('s_lshl_b32 s26, s20, 11')
e('s_lshl_b32 s27, s21, 6')
e('s_add_u32 s26, s26, s27')
e('s_add_u32 s26, s26, %d' % WS_Q)
e('v_lshlrev_b32 v5, 2, v1')
e('v_add_u32 v5, s26, v5')
e('v_and_b32 v6, 0x31, v1')
e('v_mov_b32 v31, s22')
e('s_waitcnt lgkmcnt(0)')
for st in (8,4,2,1):
    for r in range(st):
        e(f'v_add_f32 v{8+r}, v{8+r}, v{8+r+st}')
nop(2)
e('v_mov_b32_dpp v9, v8 quad_perm:[1,0,3,2] row_mask:0xf bank_mask:0xf')
nop(1)
e('v_cvt_pk_bf16_f32 v30, v8, v9')
e('v_cmp_eq_u32 vcc, 0, v6')
e('s_and_saveexec_b64 s[36:37], vcc')
e('global_store_dwordx2 v5, v[30:31], s[18:19] sc1')
e('s_mov_b64 exec, s[36:37]')
stamp(5)
e('s_lshl_b32 s26, s20, 11')
e('s_add_u32 s26, s26, %d' % WS_Q)
e('v_lshlrev_b32 v5, 5, v1')
e('v_add_u32 v5, s26, v5')
poll_loop('q', ['global_load_dwordx4 v[136:139], v5, s[18:19] sc1', 'global_load_dwordx4 v[140:143], v5, s[18:19] offset:16 sc1'], [137,139,141,143], 168)
stamp(6)
e('v_mov_b32 v137, v138'); e('v_mov_b32 v138, v140'); e('v_mov_b32 v139, v142')
e('v_lshlrev_b32 v5, 4, v1')
e(f'ds_write_b128 v5, v[136:139] offset:{LDS_Q}')
e('L_s1done:')
e('v_and_b32 v6, 15, v1')
e('v_lshrrev_b32 v7, 4, v1')
e('v_lshl_add_u32 v112, v2, 5, v6')
e('v_lshlrev_b32 v112, 8, v112')
e('v_xor_b32 v8, v7, v6')
e('v_lshl_add_u32 v112, v8, 4, v112')
e('v_xor_b32 v113, 64, v112')
e('v_xor_b32 v114, 128, v112')
e('v_xor_b32 v115, 192, v112')
e('v_lshlrev_b32 v8, 2, v7')
e('v_lshl_add_u32 v8, v2, 5, v8')
e('v_bfe_u32 v9, v1, 2, 2')
e('v_add_u32 v8, v8, v9')
e('v_and_b32 v9, 7, v8')
e('v_lshlrev_b32 v9, 1, v9')
e('v_bfe_u32 v10, v1, 1, 1')
e('v_xor_b32 v9, v9, v10')
e('v_lshlrev_b32 v116, 8, v8')
e('v_lshl_add_u32 v116, v9, 4, v116')
e('v_and_b32 v10, 1, v1')
e('v_lshl_add_u32 v116, v10, 3, v116')
e(f'v_add_u32 v116, {LDS_V}, v116')
e('v_xor_b32 v117, 16, v1')
e('v_lshlrev_b32 v117, 2, v117')
e('v_xor_b32 v118, 32, v1')
e('v_lshlrev_b32 v118, 2, v118')
e('v_and_b32 v5, 3, v1')
e('v_lshlrev_b32 v5, 8, v5')
e('v_lshl_add_u32 v5, v7, 4, v5')
e('s_waitcnt lgkmcnt(0)')
e('s_barrier')
stamp(2)
for s in range(4):
    e(f'ds_read_b128 v[{120+4*s}:{123+4*s}], v5 offset:{LDS_Q + s*64}')
for tt in range(2):
    for s in range(4):
        r = 40 + 16*tt + 4*s
        e(f'ds_read_b128 v[{r}:{r+3}], v{112+s} offset:{LDS_K + tt*4096}')
for tt in range(2):
    D = 170 + 4*tt
    for s in range(4):
        a = 40 + 16*tt + 4*s
        b = 120 + 4*s
        c = '0' if s == 0 else f'v[{D}:{D+3}]'
        e(f's_waitcnt lgkmcnt({7 - (4*tt+s)})')
        e(f'v_mfma_f32_16x16x32_bf16 v[{D}:{D+3}], v[{a}:{a+3}], v[{b}:{b+3}], {c}')
for nt in range(8):
    r = 72 + 4*nt
    if nt: e(f'v_xor_b32 v119, {nt*32}, v116')
    a = 'v119' if nt else 'v116'
    e(f'ds_read_b64_tr_b16 v[{r}:{r+1}], {a}')
    e(f'ds_read_b64_tr_b16 v[{r+2}:{r+3}], {a} offset:4096')
e(f's_mov_b32 s26, {SCALE}')
for k in range(4):
    e(f'v_cvt_pk_bf16_f32 v{136+k}, v{170+2*k}, v{171+2*k}')
for k in range(4):
    e(f'v_lshlrev_b32 v{170+2*k}, 16, v{136+k}')
    e(f'v_and_b32 v{171+2*k}, 0xffff0000, v{136+k}')
for k in range(8):
    e(f'v_mul_f32 v{170+k}, s26, v{170+k}')
for k in range(4):
    e(f'v_cvt_pk_bf16_f32 v{136+k}, v{170+2*k}, v{171+2*k}')
for k in range(4):
    e(f'v_lshlrev_b32 v{170+2*k}, 16, v{136+k}')
    e(f'v_and_b32 v{171+2*k}, 0xffff0000, v{136+k}')
e('v_max3_f32 v140, v170, v171, v172')
e('v_max3_f32 v141, v173, v174, v175')
e('v_max3_f32 v140, v140, v176, v177')
e('v_max_f32 v140, v140, v141')
e('ds_bpermute_b32 v141, v117, v140')
e('s_waitcnt lgkmcnt(0)')
e('v_max_f32 v140, v140, v141')
e('ds_bpermute_b32 v141, v118, v140')
e('s_waitcnt lgkmcnt(0)')
e('v_max_f32 v140, v140, v141')
e(f's_mov_b32 s26, {LOG2E}')
for k in range(8):
    e(f'v_sub_f32 v{170+k}, v{170+k}, v140')
for k in range(8):
    e(f'v_mul_f32 v{170+k}, s26, v{170+k}')
for k in range(8):
    e(f'v_exp_f32 v{170+k}, v{170+k}')
nop(1)
for k in range(4):
    e(f'v_cvt_pk_bf16_f32 v{136+k}, v{170+2*k}, v{171+2*k}')
e('v_add_f32 v142, v170, v171')
e('v_add_f32 v143, v172, v173')
e('v_add_f32 v144, v174, v175')
e('v_add_f32 v145, v176, v177')
for nt in range(8):
    b = 72 + 4*nt
    D = 180 + 4*nt
    e(f'v_mfma_f32_16x16x32_bf16 v[{D}:{D+3}], v[136:139], v[{b}:{b+3}], 0')
e('v_add_f32 v142, v142, v143')
e('v_add_f32 v144, v144, v145')
e('v_add_f32 v142, v142, v144')
e('ds_bpermute_b32 v143, v117, v142')
e('v_lshl_add_u32 v5, v2, 7, v1')
e('v_lshlrev_b32 v5, 4, v5')
e('v_lshl_add_u32 v6, v2, 2, v1')
e('v_lshlrev_b32 v6, 2, v6')
e('s_waitcnt lgkmcnt(0)')
e('v_add_f32 v142, v142, v143')
e('ds_bpermute_b32 v143, v118, v142')
e('s_mov_b64 exec, 0xffff')
for nt in range(8):
    D = 180 + 4*nt
    e(f'ds_write_b128 v5, v[{D}:{D+3}] offset:{LDS_OW + nt*256}')
e('s_waitcnt lgkmcnt(8)')
e('s_mov_b64 exec, 0xf')
e('v_add_f32 v142, v142, v143')
e(f'ds_write_b32 v6, v140 offset:{LDS_MW}')
e(f'ds_write_b32 v6, v142 offset:{LDS_LW}')
e('s_mov_b64 exec, -1')
e('s_branch L_join3')

e('L_bwave:')
e('s_lshl_b32 s26, s20, 23')
e('s_lshl_b32 s27, s21, 15')
e('s_add_u32 s26, s26, s27')
e('s_sub_u32 s27, s25, 4')
e('s_lshl_b32 s27, s27, 13')
e('s_add_u32 s26, s26, s27')
e('s_add_u32 s26, s26, %d' % (28672*256))
e('s_add_u32 s30, s6, s26')
e('s_addc_u32 s31, s7, 0')
e('s_add_u32 s32, s8, s26')
e('s_addc_u32 s33, s9, 0')
e('v_and_b32 v6, 15, v1')
e('v_lshrrev_b32 v7, 4, v1')
e('v_xor_b32 v8, v6, v7')
e('v_lshlrev_b32 v8, 4, v8')
e('v_lshl_add_u32 v8, v7, 8, v8')
e('v_lshlrev_b32 v9, 1, v7')
e('v_xor_b32 v9, v6, v9')
e('v_lshlrev_b32 v9, 4, v9')
e('v_lshl_add_u32 v9, v7, 8, v9')
for j in range(8):
    e(f'v_xor_b32 v{10+j}, {(j&3)<<6}, v8')
    if j >= 4: e(f'v_add_u32 v{10+j}, 4096, v{10+j}')
    e(f'v_xor_b32 v{18+j}, {(j&1)<<7}, v9')
    if j >= 4: e(f'v_add_u32 v{18+j}, 4096, v{18+j}')
for (lbase, areg, sb) in ((LDS_K, 10, 's[30:31]'), (LDS_V, 18, 's[32:33]')):
    for half in range(2):
        e(f's_add_u32 m0, s27, {lbase + half*4096}')
        nop(1)
        for jj in range(4):
            j = half*4 + jj
            e(f'global_load_lds_dwordx4 v{areg+j}, {sb} offset:{jj*1024} nt')
load_wo()
stamp(1)
get_tag(18)
e('s_barrier')
e('s_waitcnt vmcnt(2)')
stamp(6)
e('s_barrier')
stamp(2)

e('L_join3:')
e('s_waitcnt lgkmcnt(0)')
e('s_barrier')
stamp(7)
e(f's_mov_b32 s26, {LOG2E}')
e('v_and_b32 v5, 127, v0')
e('v_lshrrev_b32 v7, 7, v0')
e('v_lshlrev_b32 v6, 4, v5')
e('v_lshl_add_u32 v6, v7, 2, v6')
e('v_lshlrev_b32 v8, 2, v7')
for w in range(4):
    e(f'ds_read_b32 v{10+w}, v6 offset:{LDS_OW + w*2048}')
    e(f'ds_read_b32 v{20+w}, v8 offset:{LDS_MW + w*16}')
    e(f'ds_read_b32 v{30+w}, v8 offset:{LDS_LW + w*16}')
e('s_lshl_b32 s27, s20, 17')
e('s_lshl_b32 s28, s21, 10')
e('s_add_u32 s27, s27, s28')
e('s_add_u32 s27, s27, %d' % WS_PO)
e('v_lshlrev_b32 v6, 3, v5')
e('v_lshl_add_u32 v6, v7, 15, v6')
e('v_add_u32 v6, s27, v6')
e('s_lshl_b32 s27, s20, 11')
e('s_lshl_b32 s28, s21, 4')
e('s_add_u32 s27, s27, s28')
e('s_add_u32 s27, s27, %d' % WS_PML)
e('v_lshlrev_b32 v9, 9, v7')
e('v_add_u32 v9, s27, v9')
e('v_mov_b32 v51, s22')
e('v_mov_b32 v55, s22')
e('v_mov_b32 v57, s22')
e('s_waitcnt lgkmcnt(0)')
e('v_max3_f32 v54, v20, v21, v22')
e('v_max_f32 v54, v54, v23')
for w in range(4): e(f'v_sub_f32 v{20+w}, v{20+w}, v54')
for w in range(4): e(f'v_mul_f32 v{20+w}, s26, v{20+w}')
for w in range(4): e(f'v_exp_f32 v{20+w}, v{20+w}')
nop(1)
e('v_mul_f32 v50, v20, v10')
e('v_mul_f32 v56, v20, v30')
for w in range(1,4):
    e(f'v_fmac_f32 v50, v{20+w}, v{10+w}')
    e(f'v_fmac_f32 v56, v{20+w}, v{30+w}')
e('global_store_dwordx2 v6, v[50:51], s[18:19] sc1')
e('v_cmp_eq_u32 vcc, 0, v5')
e('s_and_saveexec_b64 s[36:37], vcc')
e('s_cbranch_execz L_noml')
e('global_store_dwordx4 v9, v[54:57], s[18:19] sc1')
e('L_noml:')
e('s_mov_b64 exec, s[36:37]')
e('s_lshl_b32 s26, s34, 9')
e('s_add_u32 s26, s26, %d' % WS_PML)
e('v_and_b32 v5, 31, v1')
e('v_lshlrev_b32 v5, 4, v5')
e('v_add_u32 v5, s26, v5')
e('s_lshl_b32 s26, s34, 15')
e('s_lshl_b32 s27, s35, 7')
e('s_add_u32 s26, s26, s27')
e('s_add_u32 s26, s26, %d' % WS_PO)
e('v_lshrrev_b32 v7, 4, v0')
e('v_lshlrev_b32 v6, 10, v7')
e('v_and_b32 v16, 15, v0')
e('v_lshl_add_u32 v6, v16, 3, v6')
e('v_add_u32 v6, s26, v6')
e('v_lshlrev_b32 v17, 2, v7')
e('v_xor_b32 v18, 16, v1')
e('v_lshlrev_b32 v18, 2, v18')
e('v_xor_b32 v19, 32, v1')
e('v_lshlrev_b32 v19, 2, v19')
e('s_barrier')
stamp(8)
poll_loop('p', ['global_load_dwordx4 v[8:11], v5, s[18:19] sc1', 'global_load_dwordx2 v[14:15], v6, s[18:19] sc1'], [9, 11, 15], 168)
stamp(9)
e('v_mov_b32 v12, v8')
nop(2)
for mod in ('quad_perm:[1,0,3,2]', 'quad_perm:[2,3,0,1]', 'row_ror:4', 'row_ror:8'):
    e(f'v_max_f32_dpp v12, v12, v12 {mod} row_mask:0xf bank_mask:0xf')
    nop(2)
e('ds_bpermute_b32 v13, v18, v12')
e('s_waitcnt lgkmcnt(0)')
e('v_max_f32 v12, v12, v13')
e(f's_mov_b32 s26, {LOG2E}')
e('v_sub_f32 v8, v8, v12')
e('v_mul_f32 v8, s26, v8')
e('v_exp_f32 v8, v8')
nop(1)
e('ds_bpermute_b32 v20, v17, v8')
e('v_mul_f32 v12, v8, v10')
nop(2)
for mod in ('quad_perm:[1,0,3,2]', 'quad_perm:[2,3,0,1]', 'row_ror:4', 'row_ror:8'):
    e(f'v_add_f32_dpp v12, v12, v12 {mod} row_mask:0xf bank_mask:0xf')
    nop(2)
e('ds_bpermute_b32 v13, v18, v12')
e('s_waitcnt lgkmcnt(1)')
e('v_mul_f32 v14, v14, v20')
e('ds_bpermute_b32 v21, v18, v14')
e('s_waitcnt lgkmcnt(1)')
e('v_add_f32 v12, v12, v13')
e('v_rcp_f32 v12, v12')
e('s_waitcnt lgkmcnt(0)')
e('v_add_f32 v14, v14, v21')
e('ds_bpermute_b32 v21, v19, v14')
e('v_lshlrev_b32 v5, 6, v2')
e('v_lshl_add_u32 v5, v16, 2, v5')
e('s_waitcnt lgkmcnt(0)')
e('v_add_f32 v14, v14, v21')
e('v_mul_f32 v14, v14, v12')
e('s_mov_b64 exec, 0xffff')
e(f'ds_write_b32 v5, v14 offset:{LDS_OS}')
e('s_mov_b64 exec, -1')
e('v_lshlrev_b32 v5, 3, v2')
e('s_waitcnt lgkmcnt(0)')
e('s_barrier')
for w in range(8):
    e(f'ds_read_b64 v[{136+2*w}:{137+2*w}], v5 offset:{LDS_OS + w*64}')
for d in range(4):
    e(f'v_lshlrev_b32 v{40+2*d}, 16, v{104+d}')
    e(f'v_and_b32 v{41+2*d}, 0xffff0000, v{104+d}')
    e(f'v_lshlrev_b32 v{48+2*d}, 16, v{108+d}')
    e(f'v_and_b32 v{49+2*d}, 0xffff0000, v{108+d}')
e('v_lshlrev_b32 v5, 11, v2')
e('v_lshl_add_u32 v5, v1, 5, v5')
e('s_waitcnt lgkmcnt(0)')
for st in (8,4,2):
    for r in range(st):
        e(f'v_add_f32 v{136+r}, v{136+r}, v{136+r+st}')
e('v_cvt_pk_bf16_f32 v136, v136, v137')
e('v_lshlrev_b32 v24, 16, v136')
e('v_and_b32 v25, 0xffff0000, v136')
stamp(10)
for j in range(8):
    e(f'v_mul_f32 v{28+j}, v24, v{40+j}')
for j in range(8):
    e(f'v_fmac_f32 v{28+j}, v25, v{48+j}')
e(f'ds_write_b128 v5, v[28:31] offset:{LDS_R}')
e(f'ds_write_b128 v5, v[32:35] offset:{LDS_R+16}')
e('v_lshlrev_b32 v5, 2, v0')
e('s_lshl_b32 s26, s2, 12')
e('s_add_u32 s26, s26, %d' % WS_OUTP)
e('v_lshlrev_b32 v6, 3, v0')
e('v_add_u32 v6, s26, v6')
e('v_mov_b32 v9, s22')
e('s_waitcnt lgkmcnt(0)')
e('s_barrier')
for w in range(8):
    e(f'ds_read_b32 v{136+w}, v5 offset:{LDS_R + w*2048}')
e('s_waitcnt lgkmcnt(0)')
for st in (4,2,1):
    for r in range(st):
        e(f'v_add_f32 v{136+r}, v{136+r}, v{136+r+st}')
e('v_mov_b32 v8, v136')
e('global_store_dwordx2 v6, v[8:9], s[18:19] sc1')
stamp(12)
e('s_cmp_ge_u32 s21, 8')
e('s_cbranch_scc1 L_end')
e('s_lshl_b32 s28, s20, 3')
e('s_add_u32 s28, s28, s21')
e('s_lshl_b32 s26, s28, 6')
e('s_add_u32 s26, s26, %d' % WS_OUTP)
e('v_lshrrev_b32 v5, 1, v0')
e('v_lshlrev_b32 v5, 12, v5')
e('v_and_b32 v6, 1, v0')
e('v_lshl_add_u32 v5, v6, 5, v5')
e('v_add_u32 v5, s26, v5')
e('s_barrier')
poll_loop('f', ['global_load_dwordx4 v[136:139], v5, s[18:19] sc1', 'global_load_dwordx4 v[140:143], v5, s[18:19] offset:16 sc1'], [137,139,141,143], 168)
stamp(13)
nop(1)
for mod in ('quad_perm:[2,3,0,1]', 'row_ror:4', 'row_ror:8'):
    for r in (136,138,140,142):
        e(f'v_add_f32_dpp v{r}, v{r}, v{r} {mod} row_mask:0xf bank_mask:0xf')
    nop(2)
for a in (18, 19):
    for k,r in enumerate((136,138,140,142)):
        e(f'ds_bpermute_b32 v{150+k}, v{a}, v{r}')
    e('s_waitcnt lgkmcnt(0)')
    for k,r in enumerate((136,138,140,142)):
        e(f'v_add_f32 v{r}, v{r}, v{150+k}')
e('v_mov_b32 v137, v138'); e('v_mov_b32 v138, v140'); e('v_mov_b32 v139, v142')
e('v_lshlrev_b32 v5, 5, v2')
e('v_lshl_add_u32 v5, v6, 4, v5')
e('s_mov_b64 exec, 3')
e(f'ds_write_b128 v5, v[136:139] offset:{LDS_F}')
e('s_mov_b64 exec, -1')
e('s_waitcnt lgkmcnt(0)')
e('s_barrier')
e('s_cmp_lg_u32 s25, 0')
e('s_cbranch_scc1 L_end')
e('v_and_b32 v6, 3, v1')
e('v_lshlrev_b32 v5, 3, v6')
for w in range(8):
    e(f'ds_read_b64 v[{136+2*w}:{137+2*w}], v5 offset:{LDS_F + w*32}')
e('s_lshl_b32 s26, s28, 4')
e('v_lshlrev_b32 v5, 2, v6')
e('v_add_u32 v5, s26, v5')
e('s_waitcnt lgkmcnt(0)')
for st in (8,4,2):
    for r in range(st):
        e(f'v_add_f32 v{136+r}, v{136+r}, v{136+r+st}')
e('v_cvt_pk_bf16_f32 v8, v136, v137')
e('s_mov_b64 exec, 0xf')
e('global_store_dword v5, v8, s[14:15]')
e('s_cmp_lg_u32 s28, 0')
e('s_cbranch_scc1 L_end')
e('s_add_u32 s26, s23, 1')
e('v_mov_b32 v9, s26')
e('v_mov_b32 v5, 0')
e('s_mov_b64 exec, 1')
e('global_store_dword v5, v9, s[18:19] sc1')
e('L_end:')
stamp(15)
stamp_dump()
e('L_exit:')
e('s_endpgm')

hdr = open('cdna_kernels/%s.s.ref' % KN).read().split('; Override launch')[0]
out = [hdr.rstrip('\n'), f'; @launch grid=(256,1,1) block=(512,1,1) lds={LDS_TOTAL}', '.amdgcn_target "amdgcn-amd-amdhsa--gfx950"', '.text'] + L
out += ['.section .rodata,"a"','.p2align 6',f'.amdhsa_kernel {KN}_kernel','  .amdhsa_next_free_vgpr 216','  .amdhsa_next_free_sgpr 100','  .amdhsa_accum_offset 216',
 '  .amdhsa_group_segment_fixed_size 0','  .amdhsa_kernarg_size 64','  .amdhsa_user_sgpr_count 2','  .amdhsa_user_sgpr_kernarg_segment_ptr 1','  .amdhsa_system_sgpr_workgroup_id_x 1','.end_amdhsa_kernel']
open(sys.argv[2] if len(sys.argv) > 2 else 'cdna_kernels/%s.s' % KN, 'w').write('\n'.join(out) + '\n')
```
